```python
import torch

def _softmax(x, axis=-1):
    return torch.softmax(x, dim=axis)
def _gelu(x):
    return torch.nn.functional.gelu(x, approximate="tanh")
def _silu(x):
    return torch.nn.functional.silu(x)
def _sigmoid(x):
    return torch.sigmoid(x)
def _layernorm(x, axis=-1, eps=1e-5):
    m = x.mean(dim=axis, keepdim=True)
    v = x.var(dim=axis, keepdim=True, unbiased=False)
    return (x - m) / torch.sqrt(v + eps)
def _scatter_add(tgt, idx, src, axis=0):
    return tgt.clone().index_add_(axis, idx, src)
def _segment_sum(src, seg, n):
    out = torch.zeros((n,) + src.shape[1:], dtype=src.dtype)
    return out.index_add_(0, seg, src)
def _pad(x, pw):
    flat = tuple(v for pair in reversed(pw) for v in pair)
    return torch.nn.functional.pad(x, flat)

kernel_name = 'standalone__deepnorm__sampling'

def setup_inputs():

    _w = (lambda a: (lambda t: t.to(torch.bfloat16) if t.is_floating_point() else t)(torch.as_tensor(a)))
    B, S, D = 1024, 16, 640
    return {
        "x": _w((lambda *s: torch.randn(*s, dtype=torch.bfloat16) * 0.05)(B, S, D)),
        "f": _w((lambda *s: torch.randn(*s, dtype=torch.bfloat16) * 0.05)(B, S, D)),
        "g": _w((lambda *s: torch.randn(*s, dtype=torch.bfloat16) * 0.05)(D) + 1.0),
        "b": _w((lambda *s: torch.randn(*s, dtype=torch.bfloat16) * 0.4)(D)),
        "alpha": _w(float(2.0)),
    }

def reference(x, f, g, b, alpha):
    return _layernorm(alpha * x + f, axis=-1) * g + b
```

```python
import sys
NAME = "standalone__deepnorm__sampling_kernel"
HEADER = """; Kernarg layout for this problem (64 bytes, ptrs only, base s[0:1]):
;
;
"""

def gen(eE=2, eO=0, order=None, wide=0, pk=4, palign=None):
    L = []
    a = L.append
    a(HEADER.rstrip())
    a("; @launch grid=(256,1,1) block=(1024,1,1) lds=0")
    a('.amdgcn_target "amdgcn-amd-amdhsa--gfx950"')
    a(".text")
    a(f".globl {NAME}")
    a(".p2align 8")
    a(f".type {NAME},@function")
    a(f"{NAME}:")
    NK, T0, T1, S1, S2, X, F, GB = 1, 2, 3, 4, 6, 8, 28, 48
    a("    s_load_dwordx8 s[4:11], s[0:1], 0      ; x, f, g, b")
    a("    s_load_dwordx4 s[12:15], s[0:1], 32")
    a("    v_readfirstlane_b32 s17, v0            ; wave * 64")
    a("    s_cmpk_ge_u32 s2, 0x100")
    a("    s_cbranch_scc1 L_end")
    a("    v_and_b32 v1, 15, v0")
    a("    v_bfe_u32 v0, v0, 4, 4")
    a("    s_and_b32 s16, s17, 0x300              ; generation * 256")
    a("    s_add_u32 s3, s2, s16")
    a("    s_mulk_i32 s3, 0x5000                  ; 16 rows * 1280 B")
    a("    v_lshlrev_b32 v1, 4, v1")
    a("    v_mul_u32_u24 v0, 0x500, v0")
    a("    v_add3_u32 v0, v0, v1, s3")
    a("    s_waitcnt lgkmcnt(0)")
    seq = (order or "x0 f0 g0 b0 g1 x1 f1 b1 g2 b2 x2 f2 g3 b3 x3 f3 g4 b4 x4 f4").split()
    for it in seq:
        t, k = it[0], int(it[1])
        if t == "x": a(f"    global_load_dwordx4 v[{X+4*k}:{X+4*k+3}], v0, s[4:5] offset:{256*k} nt")
        if t == "f": a(f"    global_load_dwordx4 v[{F+4*k}:{F+4*k+3}], v0, s[6:7] offset:{256*k} nt")
        if t == "g": a(f"    global_load_dwordx4 v[{GB+16*k+4}:{GB+16*k+7}], v1, s[8:9] offset:{256*k}")
        if t == "b": a(f"    global_load_dwordx4 v[{GB+16*k+12}:{GB+16*k+15}], v1, s[10:11] offset:{256*k}")
    a("    s_load_dword s18, s[12:13], 0")
    a("    s_mov_b32 s16, 0xffff0000")
    a("    s_mov_b32 s20, 0x05040100")
    a("    s_mov_b32 s21, 0x07060302")
    a("    s_mov_b32 s22, 0x3727c5ac              ; eps = 1e-5")
    a("    s_getreg_b32 s19, hwreg(HW_REG_XCC_ID, 0, 1)")
    a("    s_cmpk_ge_u32 s17, 0x300")
    a("    s_cselect_b32 s23, 1, 0")
    a("    s_lshl_b32 s23, s23, s19")
    a("    s_waitcnt lgkmcnt(0)")
    a("    s_pack_ll_b32_b16 s18, s18, 0x3f80")
    n = len(seq)
    waited = [-1]
    def wait_for(idx):
        if idx > waited[0]:
            a(f"    s_waitcnt vmcnt({n-1-idx})")
            waited[0] = idx
    def dpp(v, r):
        a(f"    v_add_f32_dpp v{v}, v{v}, v{v} row_ror:{r} row_mask:0xf bank_mask:0xf")
    wleft = [wide]
    def enc():
        if wleft[0] > 0:
            wleft[0] -= 1
            return "_e64"
        return ""
    i = 0
    while i < n:
        t, k = seq[i][0], int(seq[i][1])
        if t in "gb":
            j = i
            while j+1 < n and seq[j+1][0] in "gb": j += 1
            wait_for(j)
            for it in seq[i:j+1]:
                hi = GB + 16*int(it[1]) + (4 if it[0] == "g" else 12)
                for q in range(4):
                    a(f"    v_lshlrev_b32{enc()} v{hi-4+q}, 16, v{hi+q}")
                for q in range(4):
                    a(f"    v_and_b32{enc()} v{hi+q}, s16, v{hi+q}")
            i = j+1
            continue
        other = ("f" if t == "x" else "x") + str(k)
        if seq.index(other) > i:
            i += 1
            continue
        sites = [val for val, e in ((1, eE), (2, eO)) if e == k]
        if len(sites) == 2: a("    s_cmp_lg_u32 s23, 0")
        elif sites: a(f"    s_cmp_eq_u32 s23, {sites[0]}")
        wait_for(i)
        if sites:
            a(f"    s_cbranch_scc0 L_nobar{k}")
            a("    s_barrier")
            a(f"L_nobar{k}:")
        c = "0" if k == 0 else f"v{NK}"
        for q in range(4):
            x = X+4*k+q; f = F+4*k+q; tt = T0 + (q & 1)
            a(f"    v_perm_b32 v{tt}, v{f}, v{x}, s20")
            a(f"    v_perm_b32 v{f}, v{f}, v{x}, s21")
            a(f"    v_dot2_f32_bf16 v{x}, v{tt}, s18, {c}")
            a(f"    v_dot2_f32_bf16 v{f}, v{f}, s18, {c}")
        prs = [X+4*k, F+4*k, X+4*k+2, F+4*k+2]
        if k == 0:
            a(f"    v_pk_add_f32 v[{S1}:{S1+1}], v[{prs[0]}:{prs[0]+1}], v[{prs[1]}:{prs[1]+1}]")
            a("    s_nop 1")
            a(f"    v_pk_add_f32 v[{S2}:{S2+1}], v[{prs[2]}:{prs[2]+1}], v[{prs[3]}:{prs[3]+1}]")
            a(f"    v_pk_add_f32 v[{S1}:{S1+1}], v[{S1}:{S1+1}], v[{S2}:{S2+1}]")
            a(f"    v_add_f32 v{NK}, v{S1}, v{S1+1}")
            for r in (8, 4, 2, 1):
                a("    s_nop 1")
                dpp(NK, r)
            a(f"    v_mul_f32 v{NK}, 0xbc000000, v{NK}")
            for p in prs:
                a(f"    v_pk_add_f32 v[{p}:{p+1}], v[{p}:{p+1}], v[{NK-1}:{NK}] op_sel:[0,1] op_sel_hi:[1,1]")
            a(f"    v_pk_add_f32 v[{S1}:{S1+1}], v[{prs[0]}:{prs[0]+1}], v[{prs[1]}:{prs[1]+1}]")
            a(f"    v_pk_mul_f32 v[{S2}:{S2+1}], v[{prs[0]}:{prs[0]+1}], v[{prs[0]}:{prs[0]+1}]")
            a(f"    v_pk_fma_f32 v[{S2}:{S2+1}], v[{prs[1]}:{prs[1]+1}], v[{prs[1]}:{prs[1]+1}], v[{S2}:{S2+1}]")
            rest = prs[2:]
        else:
            rest = prs
        for p in rest:
            a(f"    v_pk_add_f32 v[{S1}:{S1+1}], v[{S1}:{S1+1}], v[{p}:{p+1}]")
            a(f"    v_pk_fma_f32 v[{S2}:{S2+1}], v[{p}:{p+1}], v[{p}:{p+1}], v[{S2}:{S2+1}]")
        i += 1
    a(f"    v_add_f32 v{S1}, v{S1}, v{S1+1}")
    a(f"    v_add_f32 v{S2}, v{S2}, v{S2+1}")
    a(f"    v_mov_b32 v{S2+1}, s22")
    fill = ["    s_mov_b32 vcc_lo, s19", "    s_mov_b32 vcc_hi, 0",
            "    s_cmp_lg_u32 s23, 0"]
    for idx, r in enumerate((8, 4, 2, 1)):
        dpp(S1, r)
        dpp(S2, r)
        if r != 1: a(fill[idx])
    a(f"    v_mul_f32 v{S1}, 0xbacccccd, v{S1}")
    a(f"    v_fmac_f32 v{S2+1}, 0x3acccccd, v{S2}          ; E[d^2] + eps")
    a(f"    v_fma_f32 v{S2+1}, -v{S1}, v{S1}, v{S2+1}")
    a(f"    v_maximum3_f32 v{S2+1}, v{S2+1}, s22, s22        ; var >= 0")
    a(f"    v_rsq_f32 v{T0}, v{S2+1}")
    a("    s_nop 0")
    a(f"    v_mul_f32 v{T1}, v{S1}, v{T0}")
    ks = [k for k in range(5) if k != pk] + [pk]
    for k in ks:
        for j in (0, 2):
            x = X+4*k+j; f = F+4*k+j; g = GB+16*k+j
            a(f"    v_pk_fma_f32 v[{x}:{x+1}], v[{x}:{x+1}], v[{T0}:{T1}], v[{T0}:{T1}] op_sel:[0,0,1] op_sel_hi:[1,0,1]")
            a(f"    v_pk_fma_f32 v[{f}:{f+1}], v[{f}:{f+1}], v[{T0}:{T1}], v[{T0}:{T1}] op_sel:[0,0,1] op_sel_hi:[1,0,1]")
            a(f"    v_pk_fma_f32 v[{x}:{x+1}], v[{x}:{x+1}], v[{g}:{g+1}], v[{g+8}:{g+9}]")
            a(f"    v_pk_fma_f32 v[{f}:{f+1}], v[{f}:{f+1}], v[{g+4}:{g+5}], v[{g+12}:{g+13}]")
            a(f"    v_cvt_pk_bf16_f32 v{x}, v{x}, v{f}")
            a(f"    v_cvt_pk_bf16_f32 v{x+1}, v{x+1}, v{f+1}")
        if k != pk:
            a(f"    s_cbranch_scc0 L_hold{k}")
            a(f"    global_store_dwordx4 v0, v[{X+4*k}:{X+4*k+3}], s[14:15] offset:{256*k} nt")
            a(f"L_hold{k}:")
    a("    s_cbranch_scc1 L_last")
    a("L_bar:")
    a("    s_barrier")
    for k in ks[:4]:
        a(f"    global_store_dwordx4 v0, v[{X+4*k}:{X+4*k+3}], s[14:15] offset:{256*k} nt")
    a("L_last:")
    a("    s_cbranch_vccnz L_odd")
    a(f"    global_store_dwordx4 v0, v[{X+4*pk}:{X+4*pk+3}], s[14:15] offset:{256*pk} nt")
    a("    s_endpgm")
    a("L_odd:")
    a(f"    global_store_dwordx4 v0, v[{X+4*pk}:{X+4*pk+3}], s[14:15] offset:{256*pk}")
    a("L_end:")
    a("    s_endpgm")
    a('.section .rodata,"a"')
    a(".p2align 6")
    a(f".amdhsa_kernel {NAME}")
    a("  .amdhsa_next_free_vgpr 128")
    a("  .amdhsa_next_free_sgpr 24")
    a("  .amdhsa_accum_offset 128")
    a("  .amdhsa_group_segment_fixed_size 0")
    a("  .amdhsa_kernarg_size 64")
    a("  .amdhsa_user_sgpr_count 2")
    a("  .amdhsa_user_sgpr_kernarg_segment_ptr 1")
    a("  .amdhsa_system_sgpr_workgroup_id_x 1")
    a("  .amdhsa_float_denorm_mode_32 3")
    a(".end_amdhsa_kernel")
    return "\n".join(L) + "\n"

if __name__ == "__main__":
    sys.stdout.write(gen())
```
